```python
import torch

def _softmax(x, axis=-1):
    return torch.softmax(x, dim=axis)
def _gelu(x):
    return torch.nn.functional.gelu(x, approximate="tanh")
def _silu(x):
    return torch.nn.functional.silu(x)
def _sigmoid(x):
    return torch.sigmoid(x)
def _layernorm(x, axis=-1, eps=1e-5):
    m = x.mean(dim=axis, keepdim=True)
    v = x.var(dim=axis, keepdim=True, unbiased=False)
    return (x - m) / torch.sqrt(v + eps)
def _scatter_add(tgt, idx, src, axis=0):
    return tgt.clone().index_add_(axis, idx, src)
def _segment_sum(src, seg, n):
    out = torch.zeros((n,) + src.shape[1:], dtype=src.dtype)
    return out.index_add_(0, seg, src)
def _pad(x, pw):
    flat = tuple(v for pair in reversed(pw) for v in pair)
    return torch.nn.functional.pad(x, flat)

kernel_name = 'parallel_sum__mha_block_cached__mixer_token_mlp__decode'

def setup_inputs():

    _w = (lambda a: (lambda t: t.to(torch.bfloat16) if t.is_floating_point() else t)(torch.as_tensor(a)))
    def _A_setup():
        B, Sq, D = 8, 1, 512
        H, Sk, Dh = 32, 4096, 128
        return {
            "x": _w((lambda *s: torch.randn(*s, dtype=torch.bfloat16) * 0.05)(B, Sq, D)),
            "k_cache": _w((lambda *s: torch.randn(*s, dtype=torch.bfloat16) * 3.2)(B, H, Sk, Dh)),
            "v_cache": _w((lambda *s: torch.randn(*s, dtype=torch.bfloat16) * 0.8)(B, H, Sk, Dh)),
            "wq": _w((lambda *s: torch.randn(*s, dtype=torch.bfloat16) * 3.2)(D, H * Dh) * (D ** -0.5)),
            "wo": _w((lambda *s: torch.randn(*s, dtype=torch.bfloat16) * 0.8)(H * Dh, D) * ((H * Dh) ** -0.5)),
        }
    _A_in = _A_setup()

    def _B_setup():
        B, S, D, F = 8, 1, 512, 1792
        return {
            "x": _w((lambda *s: torch.randn(*s, dtype=torch.bfloat16) * 0.05)(B, S, D)),
            "w1": _w((lambda *s: torch.randn(*s, dtype=torch.bfloat16) * 3.2)(S, F) * (S ** -0.5)),
            "b1": _w((lambda *s: torch.randn(*s, dtype=torch.bfloat16) * 3.2)(F) * 0.02),
            "w2": _w((lambda *s: torch.randn(*s, dtype=torch.bfloat16) * 0.8)(F, S) * (F ** -0.5)),
            "b2": _w((lambda *s: torch.randn(*s, dtype=torch.bfloat16) * 0.8)(S) * 0.02),
        }
    _B_in = _B_setup()

    return {
        "A_x": _A_in["x"],
        "A_k_cache": _A_in["k_cache"],
        "A_v_cache": _A_in["v_cache"],
        "A_wq": _A_in["wq"],
        "A_wo": _A_in["wo"],
        "B_x": _B_in["x"],
        "B_w1": _B_in["w1"],
        "B_b1": _B_in["b1"],
        "B_w2": _B_in["w2"],
        "B_b2": _B_in["b2"],
    }

def reference(A_x, A_k_cache, A_v_cache, A_wq, A_wo, B_x, B_w1, B_b1, B_w2, B_b2):
    def _A_ref(x, k_cache, v_cache, wq, wo):
        B, Sq, D = x.shape
        H, Dh = 32, 128
        q = (lambda x, *d: x.permute(*d))((x @ wq).reshape(B, Sq, H, Dh), 0, 2, 1, 3)
        scores = torch.einsum("bhqd,bhkd->bhqk", q, k_cache) * (Dh ** -0.5)
        p = _softmax(scores, axis=-1)
        o = torch.einsum("bhqk,bhkd->bhqd", p, v_cache)
        return (lambda x, *d: x.permute(*d))(o, 0, 2, 1, 3).reshape(B, Sq, H * Dh) @ wo

    def _B_ref(x, w1, b1, w2, b2):
        B, S, D = x.shape
        h = _layernorm(x, axis=-1)
        u = torch.einsum("bsd,sf->bdf", h, w1) + b1
        u = _gelu(u)
        y = torch.einsum("bdf,fs->bds", u, w2) + b2
        return (lambda x, *d: x.permute(*d))(y, 0, 2, 1)

    x = A_x
    xn = _layernorm(x, axis=-1)
    return x + _A_ref(xn, A_k_cache, A_v_cache, A_wq, A_wo) + _B_ref(xn, B_w1, B_b1, B_w2, B_b2)
```

```python
import re

TRANS = ("v_exp_f32", "v_log_f32", "v_rcp_f32", "v_rsq_f32", "v_sqrt_f32", "v_sin_f32", "v_cos_f32")

def regs_of(tok):
    tok = tok.strip()
    tok = re.sub(r"^-|^abs\(|\)$|^\|", "", tok).rstrip("|")
    m = re.fullmatch(r"([vsa])(\d+)", tok)
    if m: return [(m.group(1), int(m.group(2)))]
    m = re.fullmatch(r"([vsa])\[(\d+):(\d+)\]", tok)
    if m: return [(m.group(1), i) for i in range(int(m.group(2)), int(m.group(3)) + 1)]
    if tok in ("vcc", "vcc_lo", "vcc_hi"): return [("vcc", 0)]
    if tok in ("exec", "exec_lo", "exec_hi"): return [("exec", 0)]
    if tok == "m0": return [("m0", 0)]
    return []

class Ins:
    def __init__(self, text):
        self.text = text
        t = text.split(";")[0].strip()
        self.label = t.endswith(":")
        self.directive = t.startswith(".")
        self.op = t.split()[0] if t and not self.label else ""
        self.w = []; self.r = []; self.srcC = []; self.dppsrc = []
        self.states = 1
        if self.label or self.directive or not t:
            self.states = 0; return
        rest = t[len(self.op):].strip()
        ops = []; depth = 0; cur = ""
        for ch in rest:
            if ch == "[": depth += 1
            if ch == "]": depth -= 1
            if ch == "," and depth == 0: ops.append(cur); cur = ""
            else: cur += ch
        ops.append(cur)
        mods = ""
        if ops:
            parts = ops[-1].strip().split(None, 1)
            if parts:
                ops[-1] = parts[0]
                if len(parts) > 1: mods = parts[1]
        ops = [o.strip() for o in ops if o.strip()]
        self.ops = ops; self.mods = mods
        op = self.op
        base = re.sub(r"_(e32|e64|dpp|sdwa)$", "", op)
        self.base = base
        self.valu = op.startswith("v_")
        self.mfma = op.startswith("v_mfma")
        self.dpp = op.endswith("_dpp")
        self.trans = base in TRANS
        self.dot = base.startswith("v_dot")
        self.perml = base.startswith("v_permlane")
        self.rdlane = base in ("v_readlane_b32", "v_readfirstlane_b32")
        self.vmem = op.startswith(("buffer_", "global_", "flat_"))
        self.ds = op.startswith("ds_")
        self.salu = op.startswith("s_")
        self.widestore = bool(re.search(r"store_dwordx[34]", op))
        R = lambda i: regs_of(ops[i]) if i < len(ops) else []
        allr = lambda a: [x for i in range(a, len(ops)) for x in R(i)]
        if op == "s_nop":
            self.states = int(ops[0], 0) + 1
        elif self.valu:
            self.w = R(0); self.r = allr(1)
            if base in ("v_dot2c_f32_bf16", "v_fmac_f32", "v_pk_fmac_f16", "v_writelane_b32"):
                self.r += R(0); self.srcC = R(0)
            if base == "v_dot2_f32_bf16": self.srcC = R(3)
            if self.perml: self.w = R(0) + R(1); self.r = R(0) + R(1)
            if base in ("v_add_co_u32", "v_addc_co_u32", "v_sub_co_u32"):
                self.w = R(0) + R(1); self.r = allr(2)
            if self.dpp: self.dppsrc = R(1)
            if base == "v_cndmask_b32" and len(ops) == 3: self.r += [("vcc", 0)]
        elif self.vmem:
            if "_store" in op or ("atomic" in op and "sc0" not in mods.split()):
                self.r = allr(0)
                if "_store" in op:
                    self.data = R(0) if op.startswith("buffer_") else R(1)
            elif op.startswith(("buffer_wbl2", "buffer_inv")):
                pass
            else:
                self.w = R(0); self.r = allr(1)
                if "atomic" in op and op.startswith("buffer_"): self.r += R(0)
        elif self.ds:
            if op.startswith(("ds_write", "ds_add")): self.r = allr(0)
            else: self.w = R(0); self.r = allr(1)
        elif self.salu:
            if op.startswith(("s_cmp", "s_cbranch", "s_branch", "s_waitcnt", "s_barrier", "s_endpgm", "s_sleep", "s_setprio", "s_bitcmp")):
                self.r = allr(0)
            else:
                self.w = R(0); self.r = allr(1)
                if "saveexec" in op: self.w += [("exec", 0)]

def need(p, c):
    n = 0
    pw = set(p.w)
    if p.valu:
        vw = {x for x in pw if x[0] == "v"}
        sw = {x for x in pw if x[0] in ("s", "vcc")}
        if vw:
            if c.valu and c.dpp and vw & set(c.dppsrc): n = max(n, 2)
            if c.valu and c.perml and vw & set(c.r): n = max(n, 2)
            if c.valu and c.rdlane and vw & set(c.r): n = max(n, 1)
            if p.trans and c.valu and not c.trans and vw & set(c.r): n = max(n, 1)
            if p.trans and (c.vmem or c.ds) and vw & set(c.r): n = max(n, 1)
            if c.valu and c.mfma and vw & set(c.r): n = max(n, 2)
            if p.dot:
                touched = vw & (set(c.r) | set(c.w))
                if touched:
                    nonC = set(c.r) - set(c.srcC)
                    same = c.valu and c.dot and c.base == p.base and not (vw & nonC) and (vw & set(c.srcC))
                    if not same: n = max(n, 3)
        if sw:
            if c.valu and sw & set(c.r): n = max(n, 4 if c.base in ("v_readlane_b32", "v_writelane_b32") else 2)
            if c.vmem and sw & set(c.r): n = max(n, 5)
            if c.salu and sw & set(c.r): n = max(n, 1)
            if c.op in ("s_cbranch_vccz", "s_cbranch_vccnz") and ("vcc", 0) in sw: n = max(n, 1)
        if ("exec", 0) in pw:
            n = max(n, 5)
    if p.vmem and p.widestore:
        if set(p.data) & set(c.w): n = max(n, 2)
    return n

class Asm:
    def __init__(self):
        self.L = []
    def __call__(self, text):
        for line in text.split("\n"):
            line = line.strip()
            if line: self.L.append(Ins(line))
    def fix(self):
        out = []
        for ins in self.L:
            if ins.states and not ins.label:
                req = 0; dist = 0
                for p in reversed(out):
                    if p.states == 0: continue
                    req = max(req, need(p, ins) - dist)
                    dist += p.states
                    if dist >= 6: break
                if req > 0:
                    out.append(Ins(f"s_nop {req-1}"))
            out.append(ins)
        self.L = out
    def check_edges(self):
        labels = {i.text.split(";")[0].strip()[:-1]: k for k, i in enumerate(self.L) if i.label}
        probs = []
        for k, b in enumerate(self.L):
            if b.op.startswith(("s_cbranch", "s_branch")):
                tgt = labels[b.ops[0]]
                tail = [x for x in self.L[max(0, k - 12):k + 1] if x.states]
                head = [x for x in self.L[tgt:tgt + 14] if x.states][:6]
                seq = tail + head
                for ci in range(len(tail), len(seq)):
                    dist = 0
                    for pi in range(ci - 1, -1, -1):
                        if pi < len(tail) and need(seq[pi], seq[ci]) > dist:
                            probs.append((seq[pi].text, seq[ci].text))
                        dist += seq[pi].states
                        if dist >= 6: break
        return probs
    def text(self):
        return "\n".join((i.text if (i.label or i.directive) else "    " + i.text) for i in self.L) + "\n"
```

```python
import struct, sys
from asmlib import Asm
NAME = "parallel_sum__mha_block_cached__mixer_token_mlp__decode"
def f2u(x): return struct.unpack("<I", struct.pack("<f", x))[0]
HEADER = open("header.txt").read()

LDS_Q = 0x000; LDS_O = 0x800; LDS_ML = 0x1000; LDS_Y = 0x1040
DPPF = "row_mask:0xf bank_mask:0xf"

def gen(win=5, flags="nt", n0=32, stamps=False, prio=3):
    A = Asm()
    nst = [0]
    def stamp(k):
        if stamps:
            A(f"s_memrealtime s[{60+2*k}:{61+2*k}]")
            if k: A("s_waitcnt lgkmcnt(0)")
    def dump_stamps(role):
        if not stamps: return
        A("s_waitcnt lgkmcnt(0)")
        A("s_load_dwordx2 s[58:59], s[0:1], 96")
        A("s_getreg_b32 s78, hwreg(HW_REG_XCC_ID)")
        A("s_mov_b32 s79, 0")
        A(f"s_lshl_b32 s57, s2, 8"); A(f"s_add_u32 s57, s57, {0x100000 + role*128}")
        A("v_mov_b32 v100, s57")
        for k in range(20): A(f"v_mov_b32 v{102+k}, s{60+k}")
        A("s_waitcnt lgkmcnt(0)")
        A("s_mov_b64 exec, 1")
        for k in range(5): A(f"global_store_dwordx4 v100, v[{102+4*k}:{105+4*k}], s[58:59] offset:{16*k}")
    def allreduce(op, t, t2):
        for sh in (8, 4, 2, 1): A(f"{op}_dpp v{t}, v{t}, v{t} row_ror:{sh} {DPPF}")
        A(f"v_mov_b32 v{t2}, v{t}"); A(f"v_permlane16_swap_b32 v{t}, v{t2}"); A(f"{op} v{t}, v{t}, v{t2}")
        A(f"v_mov_b32 v{t2}, v{t}"); A(f"v_permlane32_swap_b32 v{t}, v{t2}"); A(f"{op} v{t}, v{t}, v{t2}")
    def rowreduce8(acc):
        for i in range(4): A(f"v_permlane32_swap_b32 v{acc+i}, v{acc+i+4}")
        for i in range(4): A(f"v_add_f32 v{acc+i}, v{acc+i}, v{acc+i+4}")
        for i in range(2): A(f"v_permlane16_swap_b32 v{acc+i}, v{acc+i+2}")
        for i in range(2): A(f"v_add_f32 v{acc+i}, v{acc+i}, v{acc+i+2}")
    def rbf(d, s, mask):
        A(f"v_cvt_pk_bf16_f32 v{d}, v{s}, v{s}"); A(f"v_and_b32 v{d}, {mask}, v{d}")

    A(f"{NAME}_kernel:")
    A("s_cmp_ge_u32 s2, 256"); A("s_cbranch_scc1 L_end")
    A("s_load_dwordx4 s[52:55], s[0:1], 8")
    if stamps:
        for k in range(60, 78): A(f"s_mov_b32 s{k}, 0")
    stamp(0)
    A("v_lshrrev_b32 v1, 6, v0")
    A("v_and_b32 v5, 63, v0")
    A("v_readfirstlane_b32 s3, v1")
    A("s_cmp_ge_u32 s3, 4"); A("s_cbranch_scc1 L_aux")

    Q, M, Lr, PLO, PHI, AR, ACC, T = 8, 12, 13, 14, 15, 16, 32, 40
    RING = 128
    A(f"s_setprio {prio}")
    A("v_lshlrev_b32 v1, 4, v5")
    A("s_lshl_b32 s16, s3, 12")
    A("v_add_u32 v1, s16, v1")
    A("v_add_u32 v2, 0x4000, v1"); A("v_add_u32 v3, 0x8000, v1"); A("v_add_u32 v4, 0xc000, v1")
    A("s_lshl_b32 s16, s2, 20")
    A("s_mov_b32 s10, 0x100000"); A("s_mov_b32 s11, 0x20000"); A("s_mov_b32 s14, 0x100000"); A("s_mov_b32 s15, 0x20000")
    A("s_waitcnt lgkmcnt(0)")
    A("s_add_u32 s8, s52, s16"); A("s_addc_u32 s9, s53, 0")
    A("s_add_u32 s12, s54, s16"); A("s_addc_u32 s13, s55, 0")
    A("s_mov_b32 s16, 0"); A("s_mov_b32 s17, 0")
    def issue(n):
        r = n & 31; isV = r >= 16; i = r & 15
        srd = 12 if isV else 8; so = 17 if isV else 16
        reg = RING + 4 * r
        off = f" offset:{(i & 3) * 1024}" if i & 3 else ""
        A(f"buffer_load_dwordx4 v[{reg}:{reg+3}], v{1 + (i >> 2)}, s[{srd}:{srd+3}], s{so} offen{off} {flags}")
        if i == 15: A(f"s_add_u32 s{so}, s{so}, 0x10000")
    for n in range(n0):
        if n >= win: A(f"s_waitcnt vmcnt({win-1})")
        issue(n)
        if n == win - 1:
            A("s_mov_b32 s20, 0xcccccccc"); A("s_mov_b32 s21, 0xcccccccc")
            A("s_mov_b32 s22, 0xaaaaaaaa"); A("s_mov_b32 s23, 0xaaaaaaaa")
            A(f"s_mov_b32 s24, {hex(f2u(128 ** -0.5))}"); A(f"s_mov_b32 s25, {hex(f2u(1.4426950408889634))}")
            A("s_mov_b32 s26, 0xffff0000")
            A(f"v_mov_b32 v{M}, 0xff7fffff"); A(f"v_mov_b32 v{Lr}, 0")
            for e in range(8): A(f"v_mov_b32 v{ACC+e}, 0")
            A("v_and_b32 v6, 15, v5"); A("v_lshlrev_b32 v6, 5, v6")
            A("v_lshrrev_b32 v7, 4, v5"); A("v_lshl_add_u32 v7, v7, 3, v6")
            A("s_lshl_b32 s18, s3, 9"); A(f"s_add_u32 s18, s18, {LDS_O}")
            A("v_add_u32 v7, s18, v7")
            A("s_lshl_b32 s18, s3, 4"); A(f"s_add_u32 s18, s18, {LDS_ML}")
            A(f"v_mov_b32 v{T+7}, s18")
            A("s_mov_b32 s18, 0")
    stamp(1)
    A("s_barrier")
    stamp(2)
    for p in range(4):
        A(f"ds_read_b128 v[{48+8*p}:{51+8*p}], v6 offset:{LDS_Q + 512*p}")
        A(f"ds_read_b128 v[{52+8*p}:{55+8*p}], v6 offset:{LDS_Q + 512*p + 16}")
    A("s_waitcnt lgkmcnt(4)")
    for e in range(8): A(f"v_add_f32 v{48+e}, v{48+e}, v{56+e}")
    A("s_waitcnt lgkmcnt(0)")
    for e in range(8): A(f"v_add_f32 v{64+e}, v{64+e}, v{72+e}")
    for e in range(8): A(f"v_add_f32 v{48+e}, v{48+e}, v{64+e}")
    for k in range(4): A(f"v_cvt_pk_bf16_f32 v{Q+k}, v{48+2*k}, v{49+2*k}")

    def items():
        it = []
        for i in range(16):
            s = RING + 4 * i
            ins = [f"v_dot2_f32_bf16 v{AR+i}, v{s}, v{Q}, 0"] + [f"v_dot2_f32_bf16 v{AR+i}, v{s+k}, v{Q+k}, v{AR+i}" for k in range(1, 4)]
            if i >= 9:
                a = AR + i - 9
                ins += [f"v_add_f32_dpp v{a}, v{a}, v{a} row_ror:8 row_mask:0xf bank_mask:0x3",
                        f"v_add_f32_dpp v{a}, v{a+8}, v{a+8} row_ror:8 row_mask:0xf bank_mask:0xc"]
            it.append((i, ins))
        def stB(i):
            a = AR + i
            return [f"v_add_f32_dpp v{a}, v{a}, v{a} row_half_mirror row_mask:0xf bank_mask:0x5",
                    f"v_add_f32_dpp v{a}, v{a+4}, v{a+4} row_half_mirror row_mask:0xf bank_mask:0xa"]
        a = AR + 7
        r1 = stB(0) + stB(1) + [f"v_add_f32_dpp v{a}, v{a}, v{a} row_ror:8 row_mask:0xf bank_mask:0x3",
              f"v_add_f32_dpp v{a}, v{a+8}, v{a+8} row_ror:8 row_mask:0xf bank_mask:0xc"] + stB(2) + stB(3)
        qp2 = "quad_perm:[2,3,0,1] " + DPPF; qp1 = "quad_perm:[1,0,3,2] " + DPPF
        r1 += [f"v_add_f32_dpp v{AR+i}, v{AR+i}, v{AR+i} {qp2}" for i in (0, 1, 2, 3)]
        r1 += [f"v_cndmask_b32 v{AR}, v{AR}, v{AR+2}, s[20:21]", f"v_cndmask_b32 v{AR+1}, v{AR+1}, v{AR+3}, s[20:21]"]
        it.append((None, r1))
        t0, t1, t2, t3 = T, T + 1, T + 2, T + 3
        r2 = [f"v_add_f32_dpp v{AR}, v{AR}, v{AR} {qp1}", f"v_add_f32_dpp v{AR+1}, v{AR+1}, v{AR+1} {qp1}",
              f"v_cndmask_b32 v{AR}, v{AR}, v{AR+1}, s[22:23]",
              f"v_cvt_pk_bf16_f32 v{t0}, v{AR}, v{AR}", f"v_and_b32 v{t0}, s26, v{t0}", f"v_mul_f32 v{t0}, s24, v{t0}",
              f"v_cvt_pk_bf16_f32 v{t0}, v{t0}, v{t0}", f"v_and_b32 v{t0}, s26, v{t0}",
              f"v_max_f32_dpp v{t1}, v{t0}, v{t0} row_ror:8 {DPPF}",
              f"v_max_f32_dpp v{t1}, v{t1}, v{t1} row_ror:4 {DPPF}"]
        it.append((None, r2))
        r3 = [f"v_max_f32_dpp v{t1}, v{t1}, v{t1} row_ror:2 {DPPF}",
              f"v_max_f32_dpp v{t1}, v{t1}, v{t1} row_ror:1 {DPPF}",
              f"v_mov_b32 v{t2}, v{t1}", f"v_permlane16_swap_b32 v{t1}, v{t2}", f"v_max_f32 v{t1}, v{t1}, v{t2}",
              f"v_mov_b32 v{t2}, v{t1}", f"v_permlane32_swap_b32 v{t1}, v{t2}", f"v_max3_f32 v{t1}, v{t1}, v{t2}, v{M}"]
        it.append((None, r3))
        r4 = [f"v_sub_f32 v{t2}, v{M}, v{t1}", f"v_sub_f32 v{t0}, v{t0}, v{t1}",
              f"v_mul_f32 v{t2}, s25, v{t2}", f"v_mul_f32 v{t0}, s25, v{t0}",
              f"v_exp_f32 v{t2}, v{t2}", f"v_exp_f32 v{t0}, v{t0}", f"v_mov_b32 v{M}, v{t1}",
              f"v_cvt_pk_bf16_f32 v{PLO}, v{t0}, 0", f"v_fma_f32 v{Lr}, v{Lr}, v{t2}, v{t0}",
              f"v_lshlrev_b32 v{PHI}, 16, v{PLO}"] + [f"v_mul_f32 v{ACC+e}, v{t2}, v{ACC+e}" for e in range(8)]
        it.append((None, r4))
        ls = T + 5
        extra = {8: [f"v_add_f32_dpp v{ls}, v{Lr}, v{Lr} row_ror:8 {DPPF}", f"v_mov_b32 v{T+4}, v{M}"],
                 9: [f"v_add_f32_dpp v{ls}, v{ls}, v{ls} row_ror:4 {DPPF}", f"v_mov_b32 v{T+6}, s18"],
                 10: [f"v_add_f32_dpp v{ls}, v{ls}, v{ls} row_ror:2 {DPPF}"],
                 11: [f"v_add_f32_dpp v{ls}, v{ls}, v{ls} row_ror:1 {DPPF}", f"v_mov_b32 v{t3}, v{ls}"],
                 12: [f"v_permlane16_swap_b32 v{ls}, v{t3}", f"v_add_f32 v{ls}, v{ls}, v{t3}", f"v_mov_b32 v{t3}, v{ls}"],
                 13: [f"v_permlane32_swap_b32 v{ls}, v{t3}", f"v_add_f32 v{ls}, v{ls}, v{t3}",
                      f"ds_write_b96 v{T+7}, v[{T+4}:{T+6}]"]}
        extra = {k - 8: v for k, v in extra.items()}
        for i in range(16):
            s = RING + 4 * (16 + i)
            ins = []
            for k in range(4):
                ins.append(f"v_dot2c_f32_bf16_dpp v{ACC+2*k}, v{PLO}, v{s+k} row_newbcast:{i} {DPPF}")
                ins.append(f"v_dot2c_f32_bf16_dpp v{ACC+2*k+1}, v{PHI}, v{s+k} row_newbcast:{i} {DPPF}")
            ins += extra.get(i, [])
            it.append((16 + i, ins))
        return it
    def emit_iter(ev_before, issued, landed):
        for k, (slot, ins) in enumerate(items()):
            for _ in range(ev_before.get(k, 0)):
                A(f"s_waitcnt vmcnt({win-1})"); landed = max(landed, issued - win)
                issue(issued); issued += 1
            if slot is not None and landed < slot:
                A(f"s_waitcnt vmcnt({issued - 1 - slot})"); landed = slot
            for x in ins: A(x)
        return issued, landed
    nev = 32 + win - n0
    if n0 == 32:
        pos = [1, 10, 18, 24, 30, 33, 35, 35][:nev] if win <= 5 else [1, 7, 13, 18, 22, 26, 30, 33][:nev]
    else:
        pos = [int(1 + k * 34 / nev) for k in range(nev)]
    ev = {}
    for p in pos: ev[p] = ev.get(p, 0) + 1
    issued, landed = emit_iter(ev, n0, n0 - 1 - win)
    assert issued == 32 + win
    stamp(3)
    A("s_mov_b32 s18, 1")
    A("s_nop 1")
    A(".p2align 6")
    A("L_loop:")
    ev = {k: 1 for k in range(20)}
    for k in (20, 22, 24, 26): ev[k] = 1
    for k in range(28, 36): ev[k] = 1
    issued, landed = emit_iter(ev, win, -1)
    assert issued == 32 + win
    A("s_add_u32 s18, s18, 1"); A("s_cmp_lt_u32 s18, 16"); A("s_cbranch_scc1 L_loop")
    stamp(4)
    rowreduce8(ACC)
    A(f"ds_write_b64 v7, v[{ACC}:{ACC+1}]")
    A("s_waitcnt lgkmcnt(0)")
    A("s_barrier")
    if stamps:
        stamp(5)
        A("s_cmp_lg_u32 s3, 0"); A("s_cbranch_scc1 L_end")
        dump_stamps(0)
    A("s_endpgm")

    A(".p2align 6")
    A("L_aux:")
    W = 128
    A("s_load_dwordx2 s[8:9], s[0:1], 0")
    A("s_load_dwordx4 s[12:15], s[0:1], 24")
    A("s_load_dwordx8 s[16:23], s[0:1], 48")
    A("s_load_dwordx4 s[24:27], s[0:1], 80")
    A("s_load_dwordx2 s[28:29], s[0:1], 96")
    A("s_sub_u32 s3, s3, 4")
    A("s_lshr_b32 s30, s2, 5")
    A("s_and_b32 s31, s2, 31")
    A("v_lshrrev_b32 v2, 4, v5")
    A("v_and_b32 v3, 15, v5")
    A("s_lshl_b32 s4, s30, 10")
    A("v_lshl_add_u32 v6, v5, 4, s4")
    A("s_lshl_b32 s5, s3, 8"); A("s_add_u32 s5, s5, s4")
    A("v_lshl_add_u32 v7, v5, 2, s5")
    A("s_lshl_b32 s5, s31, 5"); A("s_add_u32 s5, s5, s4")
    A("s_lshl_b32 s6, s3, 3"); A("s_add_u32 s6, s6, s5")
    A("v_mov_b32 v4, s6")
    A("s_lshl_b32 s6, s3, 20"); A("s_lshl_b32 s7, s31, 8"); A("s_add_u32 s6, s6, s7")
    A("v_lshlrev_b32 v1, 18, v2"); A("v_lshl_add_u32 v1, v3, 4, v1"); A("v_add_u32 v1, s6, v1")
    A("s_mov_b32 s10, 8192"); A("s_mov_b32 s11, 0x20000")
    A("s_mov_b32 s34, 0x400000"); A("s_mov_b32 s35, 0x20000")
    A("s_waitcnt lgkmcnt(0)")
    A("s_mov_b32 s32, s12"); A("s_mov_b32 s33, s13")
    A("buffer_load_dwordx4 v[8:11], v6, s[8:11], 0 offen")
    A("buffer_load_dword v12, v7, s[8:11], 0 offen")
    A("buffer_load_dwordx2 v[14:15], v4, s[8:11], 0 offen")
    for i in range(32):
        if i: A(f"s_mov_b32 s6, {i*8192}")
        A(f"buffer_load_dwordx4 v[{W+4*i}:{W+4*i+3}], v1, s[32:35], {'s6' if i else '0'} offen")
    A(f"v_mov_b32 v16, {LDS_ML}"); A("v_lshl_add_u32 v16, v3, 2, v16"); A("v_mov_b32 v17, 0")
    A("ds_write_b32 v16, v17")
    A("s_mov_b32 s36, 0xffff0000"); A(f"s_mov_b32 s37, {hex(f2u(1.0/512))}"); A(f"s_mov_b32 s38, {hex(f2u(1e-5))}")
    A("s_mov_b32 s39, 0x05040100"); A("s_mov_b32 s40, 0x07060302")
    X = 16
    def unpack(dst, src, n):
        for k in range(n):
            A(f"v_lshlrev_b32 v{dst+2*k}, 16, v{src+k}"); A(f"v_and_b32 v{dst+2*k+1}, s36, v{src+k}")
    def lnstats(mean, rden):
        A(f"v_add_f32 v24, v{X}, v{X+1}"); A(f"v_add_f32 v25, v{X+2}, v{X+3}"); A(f"v_add_f32 v26, v{X+4}, v{X+5}"); A(f"v_add_f32 v27, v{X+6}, v{X+7}")
        A("v_add_f32 v24, v24, v25"); A("v_add_f32 v26, v26, v27"); A("v_add_f32 v24, v24, v26")
        allreduce("v_add_f32", 24, 25)
        A("v_mul_f32 v24, s37, v24")
        for e in range(8): A(f"v_sub_f32 v{26+e}, v{X+e}, v24")
        A("v_mul_f32 v25, v26, v26")
        for e in range(1, 8): A(f"v_fmac_f32 v25, v{26+e}, v{26+e}")
        allreduce("v_add_f32", 25, 26)
        A("v_mul_f32 v25, s37, v25")
        rbf(mean, 24, "s36")
        rbf(25, 25, "s36"); A("v_add_f32 v25, s38, v25"); rbf(25, 25, "s36")
        A("v_sqrt_f32 v25, v25"); rbf(25, 25, "s36")
        A(f"v_rcp_f32 v{rden}, v25")
    def lnapply(reg, n, mean, rden):
        for e in range(n): A(f"v_sub_f32 v{reg+e}, v{reg+e}, v{mean}")
        for e in range(0, n, 2): A(f"v_cvt_pk_bf16_f32 v{reg+e}, v{reg+e}, v{reg+e+1}")
        for e in range(0, n, 2):
            A(f"v_and_b32 v{reg+e+1}, s36, v{reg+e}"); A(f"v_lshlrev_b32 v{reg+e}, 16, v{reg+e}")
        for e in range(n): A(f"v_mul_f32 v{reg+e}, v{reg+e}, v{rden}")
        for e in range(0, n, 2): A(f"v_cvt_pk_bf16_f32 v{reg+e}, v{reg+e}, v{reg+e+1}")
    def lnunpack(reg, n):
        for e in range(0, n, 2):
            A(f"v_and_b32 v{reg+e+1}, s36, v{reg+e}"); A(f"v_lshlrev_b32 v{reg+e}, 16, v{reg+e}")
    A("s_waitcnt vmcnt(32)")
    stamp(1)
    unpack(X, 8, 4)
    lnstats(34, 35)
    unpack(36, 12, 1)
    lnapply(36, 2, 34, 35)
    XP = 36; GA = 40
    def permW(waits):
        spare = 127; names = []
        for c in range(16):
            if waits: A(f"s_waitcnt vmcnt({30 - 2*c})")
            row = []
            for k in range(4):
                r0 = W + 8*c + k; r1 = W + 8*c + 4 + k
                A(f"v_perm_b32 v{spare}, v{r1}, v{r0}, s39")
                A(f"v_perm_b32 v{r1}, v{r1}, v{r0}, s40")
                row.append((spare, r1)); spare = r0
            names.append(row)
        return names
    def gemv(names):
        for c in range(16):
            for k in range(4):
                lo, hi = names[c][k]
                A(f"v_dot2c_f32_bf16_dpp v{GA+2*k}, v{XP}, v{lo} row_newbcast:{c} {DPPF}")
                A(f"v_dot2c_f32_bf16_dpp v{GA+2*k+1}, v{XP}, v{hi} row_newbcast:{c} {DPPF}")
    for e in range(8): A(f"v_mov_b32 v{GA+e}, 0")
    A("v_lshlrev_b32 v13, 5, v3"); A("v_lshl_add_u32 v13, v2, 3, v13")
    A("s_lshl_b32 s6, s3, 9"); A("v_add_u32 v38, s6, v13")
    names = permW(True)
    stamp(2)
    gemv(names)
    rowreduce8(GA)
    A(f"ds_write_b64 v38, v[{GA}:{GA+1}] offset:{LDS_Q}")
    A("s_waitcnt lgkmcnt(0)")
    A("s_barrier")
    stamp(3)
    A("s_mov_b32 s44, s28"); A("s_mov_b32 s45, s29"); A("s_mov_b32 s46, 0x80000"); A("s_mov_b32 s47, 0x20000")
    A("s_lshl_b32 s6, s2, 11"); A("v_lshl_add_u32 v39, v5, 4, s6")
    A("s_lshl_b32 s6, s30, 2"); A("v_mov_b32 v6, s6")
    A("s_cmp_lg_u32 s3, 0"); A("s_cbranch_scc1 L_noclear")
    for e in range(4): A(f"v_mov_b32 v{40+e}, -1")
    A("buffer_store_dwordx4 v[40:43], v39, s[44:47], 0 offen sc1")
    A("buffer_store_dwordx4 v[40:43], v39, s[44:47], 0 offen offset:1024 sc1")
    A("v_mov_b32 v7, 1")
    A("s_waitcnt vmcnt(0)")
    A("s_mov_b64 exec, 1")
    A("global_atomic_add v6, v7, s[26:27]")
    A("s_mov_b64 exec, -1")
    A("L_noclear:")
    A("v_mul_u32_u24 v7, 56, v5")
    A("s_mov_b32 s50, 3584"); A("s_mov_b32 s51, 0x20000")
    P1, P2, P3 = 48, 76, 104
    for (ptr, dst) in ((16, P1 + 14), (18, P2 + 14), (20, P3)):
        A(f"s_mov_b32 s48, s{ptr}"); A(f"s_mov_b32 s49, s{ptr+1}")
        A(f"buffer_load_dwordx4 v[{dst}:{dst+3}], v7, s[48:51], 0 offen")
        A(f"buffer_load_dwordx4 v[{dst+4}:{dst+7}], v7, s[48:51], 0 offen offset:16")
        A(f"buffer_load_dwordx4 v[{dst+8}:{dst+11}], v7, s[48:51], 0 offen offset:32")
        A(f"buffer_load_dwordx2 v[{dst+12}:{dst+13}], v7, s[48:51], 0 offen offset:48")
    A("s_mov_b32 s48, s22"); A("s_mov_b32 s49, s23"); A("s_mov_b32 s50, 2")
    A("v_mov_b32 v7, 0")
    A("buffer_load_ushort v118, v7, s[48:51], 0 offen")
    A("v_and_b32 v7, 3, v3"); A("v_lshl_add_u32 v7, v7, 2, v2")
    A("v_lshl_add_u32 v119, v7, 1, s5")
    A(f"v_lshlrev_b32 v121, 2, v7")
    A("buffer_load_ushort v120, v119, s[8:11], 0 offen")
    lnapply(X, 8, 34, 35); lnunpack(X, 8)
    H = 8
    unpack(H, 14, 2)
    lnapply(H, 4, 34, 35); lnunpack(H, 4)
    lnstats(34, 35)
    lnapply(H, 4, 34, 35); lnunpack(H, 4)
    A("s_waitcnt vmcnt(0)")
    for base in (P1, P2):
        for k in range(14):
            A(f"v_lshlrev_b32 v{base+2*k}, 16, v{base+14+k}"); A(f"v_and_b32 v{base+2*k+1}, s36, v{base+14+k}")
    A("v_lshlrev_b32 v118, 16, v118"); A("v_lshlrev_b32 v120, 16, v120")
    A("s_lshl_b32 s6, s31, 17"); A("s_add_u32 s32, s14, s6"); A("s_addc_u32 s33, s15, 0"); A("s_mov_b32 s34, 0x20000")
    A("s_lshl_b32 s6, s3, 8")
    A("v_lshlrev_b32 v1, 15, v2"); A("v_lshl_add_u32 v1, v3, 4, v1"); A("v_add_u32 v1, s6, v1")
    for i in range(32):
        if i % 4 == 0 and i: A(f"s_mov_b32 s6, {(i//4)*4096}")
        off = f" offset:{(i%4)*1024}" if i % 4 else ""
        A(f"buffer_load_dwordx4 v[{W+4*i}:{W+4*i+3}], v1, s[32:35], {'s6' if i >= 4 else '0'} offen{off}")
    k1 = -2.0 * 0.7978845608028654 * 1.4426950408889634
    A(f"v_mov_b32 v12, {hex(f2u(k1))}"); A(f"v_mov_b32 v14, {hex(f2u(k1 * 0.044715))}")
    A("s_lshl_b32 s6, s3, 4"); A(f"s_add_u32 s6, s6, {LDS_Y}"); A("v_mov_b32 v7, s6")
    A("s_mov_b32 s7, 0")
    A("L_bloop:")
    A("v_mov_b32 v16, 0")
    def gel(pairs):
        seqs = []
        for n, pidx in enumerate(pairs):
            t = 18 + 6*n; z = t + 2; u = t + 4
            w1 = P1 + 2*pidx; b1 = P2 + 2*pidx; w2 = P3 + pidx
            seqs.append([
                f"v_pk_mul_f32 v[{t}:{t+1}], v[{w1}:{w1+1}], v[{H}:{H+1}] op_sel_hi:[1,0]",
                f"v_cvt_pk_bf16_f32 v{u}, v{t}, v{t+1}",
                f"v_lshlrev_b32 v{t}, 16, v{u}", f"v_and_b32 v{t+1}, s36, v{u}",
                f"v_pk_add_f32 v[{t}:{t+1}], v[{t}:{t+1}], v[{b1}:{b1+1}]",
                f"v_cvt_pk_bf16_f32 v{u}, v{t}, v{t+1}",
                f"v_lshlrev_b32 v{t}, 16, v{u}", f"v_and_b32 v{t+1}, s36, v{u}",
                f"v_pk_mul_f32 v[{z}:{z+1}], v[{t}:{t+1}], v[{t}:{t+1}]",
                f"v_pk_fma_f32 v[{z}:{z+1}], v[{z}:{z+1}], v[14:15], v[12:13] op_sel_hi:[1,0,0]",
                f"v_pk_mul_f32 v[{z}:{z+1}], v[{z}:{z+1}], v[{t}:{t+1}]",
                f"v_exp_f32 v{z}, v{z}", f"v_exp_f32 v{z+1}, v{z+1}",
                f"v_pk_add_f32 v[{z}:{z+1}], v[{z}:{z+1}], 1.0 op_sel_hi:[1,0]",
                f"v_rcp_f32 v{z}, v{z}", f"v_rcp_f32 v{z+1}, v{z+1}",
                f"v_pk_mul_f32 v[{z}:{z+1}], v[{z}:{z+1}], v[{t}:{t+1}]",
                f"v_cvt_pk_bf16_f32 v{u}, v{z}, v{z+1}",
                f"v_dot2c_f32_bf16 v16, v{u}, v{w2}"])
        for k in range(len(seqs[0])):
            for s in seqs: A(s[k])
    for p in range(0, 14, 2): gel((p, p + 1))
    allreduce("v_add_f32", 16, 17)
    rbf(16, 16, "s36"); A("v_add_f32 v16, v16, v118"); rbf(16, 16, "s36")
    A("ds_write_b32 v7, v16")
    A("v_add_u32 v7, 4, v7")
    A(f"v_mov_b32 v{H}, v{H+1}"); A(f"v_mov_b32 v{H+1}, v{H+2}"); A(f"v_mov_b32 v{H+2}, v{H+3}")
    A("s_add_u32 s7, s7, 1"); A("s_cmp_lt_u32 s7, 4"); A("s_cbranch_scc1 L_bloop")
    stamp(4)
    A("s_waitcnt vmcnt(0)")
    names = permW(False)
    for e in range(8): A(f"v_mov_b32 v{GA+e}, 0")
    A("s_lshl_b32 s6, s30, 16"); A("s_lshl_b32 s7, s3, 14"); A("s_add_u32 s6, s6, s7")
    A("s_lshl_b32 s7, s31, 6"); A("s_add_u32 s6, s6, s7")
    A("v_lshrrev_b32 v1, 1, v3"); A("v_lshlrev_b32 v1, 11, v1")
    A("v_and_b32 v4, 1, v3"); A("v_lshl_add_u32 v1, v4, 5, v1"); A("v_lshl_add_u32 v1, v2, 3, v1"); A("v_add_u32 v1, s6, v1")
    A("v_lshlrev_b32 v4, 3, v5")
    A("s_mov_b32 s7, 0")
    A("L_cnt:")
    A("global_load_dword v16, v6, s[26:27] sc1")
    A("s_waitcnt vmcnt(0)")
    A("v_readfirstlane_b32 s6, v16")
    A("s_cmp_ge_u32 s6, 32"); A("s_cbranch_scc1 L_cntok")
    A("s_sleep 8")
    A("s_add_u32 s7, s7, 1"); A("s_cmp_lt_u32 s7, 0x100000"); A("s_cbranch_scc1 L_cnt")
    A("L_cntok:")
    A(f"v_mov_b32 v7, {LDS_ML}")
    A("L_ml:")
    A("s_sleep 4")
    for w in range(4): A(f"ds_read_b96 v[{16+4*w}:{18+4*w}], v7 offset:{16*w}")
    A("s_waitcnt lgkmcnt(0)")
    A("v_min_u32 v32, v18, v22"); A("v_min3_u32 v32, v32, v26, v30")
    A("v_readfirstlane_b32 s6, v32")
    A("s_cmp_lt_u32 s6, 15"); A("s_cbranch_scc1 L_ml")
    for w in range(4): A(f"ds_read_b64 v[{16+4*w}:{17+4*w}], v7 offset:{16*w}")
    A("s_waitcnt lgkmcnt(0)")
    A("v_max_f32 v32, v16, v20"); A("v_max3_f32 v32, v32, v24, v28")
    A(f"s_mov_b32 s6, {hex(f2u(1.4426950408889634))}")
    for w in range(4): A(f"v_sub_f32 v{16+4*w}, v{16+4*w}, v32")
    for w in range(4): A(f"v_mul_f32 v{16+4*w}, s6, v{16+4*w}")
    for w in range(4): A(f"v_exp_f32 v{16+4*w}, v{16+4*w}")
    A("v_mul_f32 v32, v16, v17")
    for w in range(1, 4): A(f"v_fmac_f32 v32, v{16+4*w}, v{17+4*w}")
    A("v_rcp_f32 v32, v32")
    for w in range(4): A(f"v_mul_f32 v{16+4*w}, v{16+4*w}, v32")
    A("s_setprio 3")
    stamp(5)
    A("s_barrier")
    for w in range(4): A(f"ds_read_b64 v[{8+2*w}:{9+2*w}], v4 offset:{LDS_O + 512*w}")
    A(f"ds_read_b32 v121, v121 offset:{LDS_Y}")
    A("s_waitcnt lgkmcnt(4)"); A("v_pk_mul_f32 v[8:9], v[8:9], v[16:17] op_sel_hi:[1,0]")
    A("s_waitcnt lgkmcnt(3)"); A("v_pk_fma_f32 v[8:9], v[10:11], v[20:21], v[8:9] op_sel_hi:[1,0,1]")
    A("s_waitcnt lgkmcnt(2)"); A("v_pk_fma_f32 v[8:9], v[12:13], v[24:25], v[8:9] op_sel_hi:[1,0,1]")
    A("s_waitcnt lgkmcnt(1)"); A("v_pk_fma_f32 v[8:9], v[14:15], v[28:29], v[8:9] op_sel_hi:[1,0,1]")
    A(f"v_cvt_pk_bf16_f32 v{XP}, v8, v9")
    gemv(names)
    rowreduce8(GA)
    A(f"v_min_u32 v{GA}, -2, v{GA}"); A(f"v_min_u32 v{GA+1}, -2, v{GA+1}")
    A(f"buffer_store_dwordx2 v[{GA}:{GA+1}], v1, s[44:47], 0 offen sc1")
    stamp(6)
    A("s_cmp_lg_u32 s3, 0"); A("s_cbranch_scc1 L_end")
    A("s_mov_b32 s48, s24"); A("s_mov_b32 s49, s25"); A("s_mov_b32 s50, 8192")
    A("s_mov_b32 s7, 0")
    A("L_poll:")
    A("buffer_load_dwordx4 v[8:11], v39, s[44:47], 0 offen sc1")
    A("buffer_load_dwordx4 v[12:15], v39, s[44:47], 0 offen offset:1024 sc1")
    A("s_waitcnt vmcnt(0)")
    A("v_max3_u32 v16, v8, v9, v10"); A("v_max3_u32 v17, v11, v12, v13"); A("v_max3_u32 v16, v16, v14, v15"); A("v_max_u32 v16, v16, v17")
    A("v_cmp_eq_u32 vcc, -1, v16")
    A("s_cbranch_vccz L_got")
    A("s_add_u32 s7, s7, 1"); A("s_cmp_lt_u32 s7, 0x100000"); A("s_cbranch_scc1 L_poll")
    A("L_got:")
    stamp(7)
    for e in range(4): A(f"v_add_f32 v{8+e}, v{8+e}, v{12+e}")
    for e in range(4): A(f"v_add_f32_dpp v{8+e}, v{8+e}, v{8+e} row_ror:4 {DPPF}")
    for e in range(4): A(f"v_add_f32_dpp v{8+e}, v{8+e}, v{8+e} row_ror:8 {DPPF}")
    A("v_permlane32_swap_b32 v8, v10"); A("v_permlane32_swap_b32 v9, v11")
    A("v_add_f32 v8, v8, v10"); A("v_add_f32 v9, v9, v11")
    A("v_permlane16_swap_b32 v8, v9"); A("v_add_f32 v8, v8, v9")
    rbf(8, 8, "s36"); A("v_add_f32 v8, v8, v120"); rbf(8, 8, "s36"); A("s_waitcnt lgkmcnt(0)"); A("v_add_f32 v8, v8, v121")
    A("v_cvt_pk_bf16_f32 v8, v8, v8")
    A("s_mov_b32 exec_lo, 0x000f000f"); A("s_mov_b32 exec_hi, 0x000f000f")
    A("buffer_store_short v8, v119, s[48:51], 0 offen")
    if stamps:
        A("s_waitcnt vmcnt(0)")
        stamp(8)
        dump_stamps(1)
    A("L_end:")
    A("s_endpgm")
    A.fix()
    pr = A.check_edges()
    assert not pr, pr
    head = HEADER + "; @launch grid=(256,1,1) block=(512,1,1) lds=8192\n" + \
        '.amdgcn_target "amdgcn-amd-amdhsa--gfx950"\n.text\n' + f".globl {NAME}_kernel\n.p2align 8\n.type {NAME}_kernel,@function\n"
    tail = f""".section .rodata,"a"
.p2align 6
.amdhsa_kernel {NAME}_kernel
  .amdhsa_next_free_vgpr 256
  .amdhsa_next_free_sgpr 80
  .amdhsa_accum_offset 256
  .amdhsa_group_segment_fixed_size 0
  .amdhsa_kernarg_size 104
  .amdhsa_user_sgpr_count 2
  .amdhsa_user_sgpr_kernarg_segment_ptr 1
  .amdhsa_system_sgpr_workgroup_id_x 1
.end_amdhsa_kernel
"""
    return head + A.text() + tail

if __name__ == "__main__":
    import json
    kw = json.loads(sys.argv[2]) if len(sys.argv) > 2 else {}
    open(sys.argv[1], "w").write(gen(**kw))
```

```python
import struct, sys
from asmlib import Asm
NAME = "parallel_sum__mha_block_cached__mixer_token_mlp__decode"
def f2u(x): return struct.unpack("<I", struct.pack("<f", x))[0]
HEADER = open("header.txt").read()

LDS_Q = 0x000; LDS_O = 0x800; LDS_ML = 0x1000; LDS_Y = 0x1040
DPPF = "row_mask:0xf bank_mask:0xf"

def gen(win=5, flags="nt", n0=32, stamps=False, prio=3, remap=False, qwin=0, wflags='', nq=32, no=32, owin=0, itst=False, bskip=False, whi=None, boost_from=16, win0=None, fixdur=0):
    A = Asm()
    wlo = win
    if whi is None: whi = win
    win = whi
    if win0 is None: win0 = wlo
    evn = [0]
    nst = [0]
    def stamp(k):
        if stamps:
            A(f"s_memrealtime s[{60+2*k}:{61+2*k}]")
            if k: A("s_waitcnt lgkmcnt(0)")
    def dump_stamps(role):
        if not stamps: return
        A("s_waitcnt lgkmcnt(0)")
        A("s_load_dwordx2 s[58:59], s[0:1], 96")
        A("s_getreg_b32 s78, hwreg(HW_REG_XCC_ID)")
        A("s_mov_b32 s79, 0")
        A(f"s_lshl_b32 s57, s2, 8"); A(f"s_add_u32 s57, s57, {0x100000 + role*128}")
        A("v_mov_b32 v100, s57")
        for k in range(20): A(f"v_mov_b32 v{102+k}, s{60+k}")
        A("s_waitcnt lgkmcnt(0)")
        A("s_mov_b64 exec, 1")
        for k in range(5): A(f"global_store_dwordx4 v100, v[{102+4*k}:{105+4*k}], s[58:59] offset:{16*k}")
    def allreduce(op, t, t2):
        for sh in (8, 4, 2, 1): A(f"{op}_dpp v{t}, v{t}, v{t} row_ror:{sh} {DPPF}")
        A(f"v_mov_b32 v{t2}, v{t}"); A(f"v_permlane16_swap_b32 v{t}, v{t2}"); A(f"{op} v{t}, v{t}, v{t2}")
        A(f"v_mov_b32 v{t2}, v{t}"); A(f"v_permlane32_swap_b32 v{t}, v{t2}"); A(f"{op} v{t}, v{t}, v{t2}")
    def rowreduce8(acc):
        for i in range(4): A(f"v_permlane32_swap_b32 v{acc+i}, v{acc+i+4}")
        for i in range(4): A(f"v_add_f32 v{acc+i}, v{acc+i}, v{acc+i+4}")
        for i in range(2): A(f"v_permlane16_swap_b32 v{acc+i}, v{acc+i+2}")
        for i in range(2): A(f"v_add_f32 v{acc+i}, v{acc+i}, v{acc+i+2}")
    def rbf(d, s, mask):
        A(f"v_cvt_pk_bf16_f32 v{d}, v{s}, v{s}"); A(f"v_and_b32 v{d}, {mask}, v{d}")

    A(f"{NAME}_kernel:")
    A("s_cmp_ge_u32 s2, 256"); A("s_cbranch_scc1 L_end")
    A("s_load_dwordx4 s[52:55], s[0:1], 8")
    if remap:
        A("s_and_b32 s3, s2, 7"); A("s_lshl_b32 s3, s3, 2"); A("s_bfe_u32 s4, s2, 0x20003"); A("s_or_b32 s3, s3, s4")
        A("s_and_b32 s2, s2, 0xe0"); A("s_or_b32 s2, s2, s3")
    if stamps:
        for k in range(60, 78): A(f"s_mov_b32 s{k}, 0")
    stamp(0)
    A("v_lshrrev_b32 v1, 6, v0")
    A("v_and_b32 v5, 63, v0")
    A("v_readfirstlane_b32 s3, v1")
    A("s_cmp_ge_u32 s3, 4"); A("s_cbranch_scc1 L_aux")

    Q, M, Lr, PLO, PHI, AR, ACC, T = 8, 12, 13, 14, 15, 16, 32, 40
    RING = 128
    A(f"s_setprio {prio}")
    A("v_lshlrev_b32 v1, 4, v5")
    A("s_lshl_b32 s16, s3, 12")
    A("v_add_u32 v1, s16, v1")
    A("v_add_u32 v2, 0x4000, v1"); A("v_add_u32 v3, 0x8000, v1"); A("v_add_u32 v4, 0xc000, v1")
    A("s_lshl_b32 s16, s2, 20")
    A("s_mov_b32 s10, 0x100000"); A("s_mov_b32 s11, 0x20000"); A("s_mov_b32 s14, 0x100000"); A("s_mov_b32 s15, 0x20000")
    A("s_waitcnt lgkmcnt(0)")
    stamp(6)
    A("s_add_u32 s8, s52, s16"); A("s_addc_u32 s9, s53, 0")
    A("s_add_u32 s12, s54, s16"); A("s_addc_u32 s13, s55, 0")
    A("s_mov_b32 s16, 0"); A("s_mov_b32 s17, 0")
    def issue(n):
        r = n & 31; isV = r >= 16; i = r & 15
        srd = 12 if isV else 8; so = 17 if isV else 16
        reg = RING + 4 * r
        off = f" offset:{(i & 3) * 1024}" if i & 3 else ""
        A(f"buffer_load_dwordx4 v[{reg}:{reg+3}], v{1 + (i >> 2)}, s[{srd}:{srd+3}], s{so} offen{off} {flags}")
        if i == 15: A(f"s_add_u32 s{so}, s{so}, 0x10000")
    for n in range(n0):
        if n >= win0: A(f"s_waitcnt vmcnt({win0-1})")
        if n == win0: stamp(7)
        if n == 16: stamp(8)
        issue(n)
        if n == win0 - 1:
            A("s_mov_b32 s20, 0xcccccccc"); A("s_mov_b32 s21, 0xcccccccc")
            A("s_mov_b32 s22, 0xaaaaaaaa"); A("s_mov_b32 s23, 0xaaaaaaaa")
            A(f"s_mov_b32 s24, {hex(f2u(128 ** -0.5))}"); A(f"s_mov_b32 s25, {hex(f2u(1.4426950408889634))}")
            A("s_mov_b32 s26, 0xffff0000")
            A(f"v_mov_b32 v{M}, 0xff7fffff"); A(f"v_mov_b32 v{Lr}, 0")
            for e in range(8): A(f"v_mov_b32 v{ACC+e}, 0")
            A("v_and_b32 v6, 15, v5"); A("v_lshlrev_b32 v6, 5, v6")
            A("v_lshrrev_b32 v7, 4, v5"); A("v_lshl_add_u32 v7, v7, 3, v6")
            A("s_lshl_b32 s18, s3, 9"); A(f"s_add_u32 s18, s18, {LDS_O}")
            A("v_add_u32 v7, s18, v7")
            A("s_lshl_b32 s18, s3, 4"); A(f"s_add_u32 s18, s18, {LDS_ML}")
            A(f"v_mov_b32 v{T+7}, s18")
            A("s_mov_b32 s18, 0")
    stamp(1)
    A("s_barrier")
    stamp(2)
    for p in range(4):
        A(f"ds_read_b128 v[{48+8*p}:{51+8*p}], v6 offset:{LDS_Q + 512*p}")
        A(f"ds_read_b128 v[{52+8*p}:{55+8*p}], v6 offset:{LDS_Q + 512*p + 16}")
    A("s_waitcnt lgkmcnt(4)")
    for e in range(8): A(f"v_add_f32 v{48+e}, v{48+e}, v{56+e}")
    A("s_waitcnt lgkmcnt(0)")
    for e in range(8): A(f"v_add_f32 v{64+e}, v{64+e}, v{72+e}")
    for e in range(8): A(f"v_add_f32 v{48+e}, v{48+e}, v{64+e}")
    for k in range(4): A(f"v_cvt_pk_bf16_f32 v{Q+k}, v{48+2*k}, v{49+2*k}")

    def items():
        it = []
        for i in range(16):
            s = RING + 4 * i
            ins = [f"v_dot2_f32_bf16 v{AR+i}, v{s}, v{Q}, 0"] + [f"v_dot2_f32_bf16 v{AR+i}, v{s+k}, v{Q+k}, v{AR+i}" for k in range(1, 4)]
            if i >= 9:
                a = AR + i - 9
                ins += [f"v_add_f32_dpp v{a}, v{a}, v{a} row_ror:8 row_mask:0xf bank_mask:0x3",
                        f"v_add_f32_dpp v{a}, v{a+8}, v{a+8} row_ror:8 row_mask:0xf bank_mask:0xc"]
            it.append((i, ins))
        def stB(i):
            a = AR + i
            return [f"v_add_f32_dpp v{a}, v{a}, v{a} row_half_mirror row_mask:0xf bank_mask:0x5",
                    f"v_add_f32_dpp v{a}, v{a+4}, v{a+4} row_half_mirror row_mask:0xf bank_mask:0xa"]
        a = AR + 7
        r1 = stB(0) + stB(1) + [f"v_add_f32_dpp v{a}, v{a}, v{a} row_ror:8 row_mask:0xf bank_mask:0x3",
              f"v_add_f32_dpp v{a}, v{a+8}, v{a+8} row_ror:8 row_mask:0xf bank_mask:0xc"] + stB(2) + stB(3)
        qp2 = "quad_perm:[2,3,0,1] " + DPPF; qp1 = "quad_perm:[1,0,3,2] " + DPPF
        r1 += [f"v_add_f32_dpp v{AR+i}, v{AR+i}, v{AR+i} {qp2}" for i in (0, 1, 2, 3)]
        r1 += [f"v_cndmask_b32 v{AR}, v{AR}, v{AR+2}, s[20:21]", f"v_cndmask_b32 v{AR+1}, v{AR+1}, v{AR+3}, s[20:21]"]
        it.append((None, r1))
        t0, t1, t2, t3 = T, T + 1, T + 2, T + 3
        r2 = [f"v_add_f32_dpp v{AR}, v{AR}, v{AR} {qp1}", f"v_add_f32_dpp v{AR+1}, v{AR+1}, v{AR+1} {qp1}",
              f"v_cndmask_b32 v{AR}, v{AR}, v{AR+1}, s[22:23]",
              f"v_cvt_pk_bf16_f32 v{t0}, v{AR}, v{AR}", f"v_and_b32 v{t0}, s26, v{t0}", f"v_mul_f32 v{t0}, s24, v{t0}",
              f"v_cvt_pk_bf16_f32 v{t0}, v{t0}, v{t0}", f"v_and_b32 v{t0}, s26, v{t0}",
              f"v_max_f32_dpp v{t1}, v{t0}, v{t0} row_ror:8 {DPPF}",
              f"v_max_f32_dpp v{t1}, v{t1}, v{t1} row_ror:4 {DPPF}"]
        it.append((None, r2))
        r3 = [f"v_max_f32_dpp v{t1}, v{t1}, v{t1} row_ror:2 {DPPF}",
              f"v_max_f32_dpp v{t1}, v{t1}, v{t1} row_ror:1 {DPPF}",
              f"v_mov_b32 v{t2}, v{t1}", f"v_permlane16_swap_b32 v{t1}, v{t2}", f"v_max_f32 v{t1}, v{t1}, v{t2}",
              f"v_mov_b32 v{t2}, v{t1}", f"v_permlane32_swap_b32 v{t1}, v{t2}", f"v_max3_f32 v{t1}, v{t1}, v{t2}, v{M}"]
        it.append((None, r3))
        r4 = [f"v_sub_f32 v{t2}, v{M}, v{t1}", f"v_sub_f32 v{t0}, v{t0}, v{t1}",
              f"v_mul_f32 v{t2}, s25, v{t2}", f"v_mul_f32 v{t0}, s25, v{t0}",
              f"v_exp_f32 v{t2}, v{t2}", f"v_exp_f32 v{t0}, v{t0}", f"v_mov_b32 v{M}, v{t1}",
              f"v_cvt_pk_bf16_f32 v{PLO}, v{t0}, 0", f"v_fma_f32 v{Lr}, v{Lr}, v{t2}, v{t0}",
              f"v_lshlrev_b32 v{PHI}, 16, v{PLO}"] + [f"v_mul_f32 v{ACC+e}, v{t2}, v{ACC+e}" for e in range(8)]
        it.append((None, r4))
        ls = T + 5
        extra = {8: [f"v_add_f32_dpp v{ls}, v{Lr}, v{Lr} row_ror:8 {DPPF}", f"v_mov_b32 v{T+4}, v{M}"],
                 9: [f"v_add_f32_dpp v{ls}, v{ls}, v{ls} row_ror:4 {DPPF}", f"v_mov_b32 v{T+6}, s18"],
                 10: [f"v_add_f32_dpp v{ls}, v{ls}, v{ls} row_ror:2 {DPPF}"],
                 11: [f"v_add_f32_dpp v{ls}, v{ls}, v{ls} row_ror:1 {DPPF}", f"v_mov_b32 v{t3}, v{ls}"],
                 12: [f"v_permlane16_swap_b32 v{ls}, v{t3}", f"v_add_f32 v{ls}, v{ls}, v{t3}", f"v_mov_b32 v{t3}, v{ls}"],
                 13: [f"v_permlane32_swap_b32 v{ls}, v{t3}", f"v_add_f32 v{ls}, v{ls}, v{t3}",
                      f"ds_write_b96 v{T+7}, v[{T+4}:{T+6}]"]}
        extra = {k - 8: v for k, v in extra.items()}
        for i in range(16):
            s = RING + 4 * (16 + i)
            ins = []
            for k in range(4):
                ins.append(f"v_dot2c_f32_bf16_dpp v{ACC+2*k}, v{PLO}, v{s+k} row_newbcast:{i} {DPPF}")
                ins.append(f"v_dot2c_f32_bf16_dpp v{ACC+2*k+1}, v{PHI}, v{s+k} row_newbcast:{i} {DPPF}")
            ins += extra.get(i, [])
            it.append((16 + i, ins))
        return it
    def emit_iter(ev_before, issued, landed, dyn=False):
        for k, (slot, ins) in enumerate(items()):
            for _ in range(ev_before.get(k, 0)):
                if dyn and whi != wlo:
                    A(f"s_waitcnt vmcnt({whi-1})"); evn[0] += 1
                    A(f"s_cbranch_vccnz L_ev{evn[0]}"); A(f"s_waitcnt vmcnt({wlo-1})"); A(f"L_ev{evn[0]}:")
                    landed = max(landed, issued - whi)
                elif dyn:
                    A(f"s_waitcnt vmcnt({wlo-1})"); landed = max(landed, issued - wlo)
                else:
                    A(f"s_waitcnt vmcnt({win0-1})"); landed = max(landed, issued - win0)
                issue(issued); issued += 1
            if slot is not None and landed < slot:
                A(f"s_waitcnt vmcnt({issued - 1 - slot})"); landed = slot
            for x in ins: A(x)
        return issued, landed
    nev = 32 + win - n0
    if n0 == 32:
        pos = [1, 10, 18, 24, 30, 33, 35, 35][:nev] if win <= 5 else [1, 7, 13, 18, 22, 26, 30, 33][:nev]
    else:
        pos = [int(1 + k * 34 / nev) for k in range(nev)]
    ev = {}
    for p in pos: ev[p] = ev.get(p, 0) + 1
    issued, landed = emit_iter(ev, n0, n0 - 1 - win0)
    assert issued == 32 + win
    stamp(3)
    A("s_mov_b32 s18, 1")
    A("s_nop 1")
    A(".p2align 6")
    A("L_loop:")
    if itst: A("s_memrealtime s[56:57]")
    ev = {k: 1 for k in range(20)}
    for k in (20, 22, 24, 26): ev[k] = 1
    for k in range(28, 36): ev[k] = 1
    if whi != wlo:
        A(f"s_cmp_ge_u32 s18, {boost_from}"); A("s_cselect_b64 vcc, -1, 0")
    issued, landed = emit_iter(ev, win, -1, True)
    assert issued == 32 + win
    if itst:
        A("s_waitcnt lgkmcnt(0)"); A("s_mov_b32 m0, s18"); A("v_writelane_b32 v90, s56, m0")
    A("s_add_u32 s18, s18, 1"); A("s_cmp_lt_u32 s18, 16"); A("s_cbranch_scc1 L_loop")
    stamp(4)
    rowreduce8(ACC)
    A(f"ds_write_b64 v7, v[{ACC}:{ACC+1}]")
    A("s_waitcnt lgkmcnt(0)")
    A("s_barrier")
    if stamps:
        stamp(5)
        A("s_cmp_lg_u32 s3, 0"); A("s_cbranch_scc1 L_end")
        dump_stamps(0)
        if itst:
            A("s_mov_b64 exec, 0xffff"); A("s_lshl_b32 s57, s2, 6"); A("s_add_u32 s57, s57, 0x200000")
            A("v_lshl_add_u32 v100, v5, 2, s57"); A("global_store_dword v100, v90, s[58:59]")
    A("s_endpgm")

    A(".p2align 6")
    A("L_aux:")
    if fixdur: A("s_memrealtime s[58:59]")
    W = 128
    A("s_load_dwordx2 s[8:9], s[0:1], 0")
    A("s_load_dwordx4 s[12:15], s[0:1], 24")
    A("s_load_dwordx8 s[16:23], s[0:1], 48")
    A("s_load_dwordx4 s[24:27], s[0:1], 80")
    A("s_load_dwordx2 s[28:29], s[0:1], 96")
    A("s_sub_u32 s3, s3, 4")
    A("s_lshr_b32 s30, s2, 5")
    A("s_and_b32 s31, s2, 31")
    A("v_lshrrev_b32 v2, 4, v5")
    A("v_and_b32 v3, 15, v5")
    A("s_lshl_b32 s4, s30, 10")
    A("v_lshl_add_u32 v6, v5, 4, s4")
    A("s_lshl_b32 s5, s3, 8"); A("s_add_u32 s5, s5, s4")
    A("v_lshl_add_u32 v7, v5, 2, s5")
    A("s_lshl_b32 s5, s31, 5"); A("s_add_u32 s5, s5, s4")
    A("s_lshl_b32 s6, s3, 3"); A("s_add_u32 s6, s6, s5")
    A("v_mov_b32 v4, s6")
    A("s_lshl_b32 s6, s3, 20"); A("s_lshl_b32 s7, s31, 8"); A("s_add_u32 s6, s6, s7")
    A("v_lshlrev_b32 v1, 18, v2"); A("v_lshl_add_u32 v1, v3, 4, v1"); A("v_add_u32 v1, s6, v1")
    A("s_mov_b32 s10, 8192"); A("s_mov_b32 s11, 0x20000")
    A("s_mov_b32 s34, 0x400000"); A("s_mov_b32 s35, 0x20000")
    A("s_waitcnt lgkmcnt(0)")
    A("s_mov_b32 s32, s12"); A("s_mov_b32 s33, s13")
    A("buffer_load_dwordx4 v[8:11], v6, s[8:11], 0 offen")
    A("buffer_load_dword v12, v7, s[8:11], 0 offen")
    A("buffer_load_dwordx2 v[14:15], v4, s[8:11], 0 offen")
    for i in range(32):
        if i: A(f"s_mov_b32 s6, {i*8192}")
        if qwin and i >= qwin: A(f"s_waitcnt vmcnt({qwin-1})")
        if i >= nq: A("s_mov_b32 s6, 0x400000")
        A(f"buffer_load_dwordx4 v[{W+4*i}:{W+4*i+3}], v1, s[32:35], {'s6' if i else '0'} offen {wflags}")
    A(f"v_mov_b32 v16, {LDS_ML}"); A("v_lshl_add_u32 v16, v3, 2, v16"); A("v_mov_b32 v17, 0")
    A("ds_write_b32 v16, v17")
    A("s_mov_b32 s36, 0xffff0000"); A(f"s_mov_b32 s37, {hex(f2u(1.0/512))}"); A(f"s_mov_b32 s38, {hex(f2u(1e-5))}")
    A("s_mov_b32 s39, 0x05040100"); A("s_mov_b32 s40, 0x07060302")
    X = 16
    def unpack(dst, src, n):
        for k in range(n):
            A(f"v_lshlrev_b32 v{dst+2*k}, 16, v{src+k}"); A(f"v_and_b32 v{dst+2*k+1}, s36, v{src+k}")
    def lnstats(mean, rden):
        A(f"v_add_f32 v24, v{X}, v{X+1}"); A(f"v_add_f32 v25, v{X+2}, v{X+3}"); A(f"v_add_f32 v26, v{X+4}, v{X+5}"); A(f"v_add_f32 v27, v{X+6}, v{X+7}")
        A("v_add_f32 v24, v24, v25"); A("v_add_f32 v26, v26, v27"); A("v_add_f32 v24, v24, v26")
        allreduce("v_add_f32", 24, 25)
        A("v_mul_f32 v24, s37, v24")
        for e in range(8): A(f"v_sub_f32 v{26+e}, v{X+e}, v24")
        A("v_mul_f32 v25, v26, v26")
        for e in range(1, 8): A(f"v_fmac_f32 v25, v{26+e}, v{26+e}")
        allreduce("v_add_f32", 25, 26)
        A("v_mul_f32 v25, s37, v25")
        rbf(mean, 24, "s36")
        rbf(25, 25, "s36"); A("v_add_f32 v25, s38, v25"); rbf(25, 25, "s36")
        A("v_sqrt_f32 v25, v25"); rbf(25, 25, "s36")
        A(f"v_rcp_f32 v{rden}, v25")
    def lnapply(reg, n, mean, rden):
        for e in range(n): A(f"v_sub_f32 v{reg+e}, v{reg+e}, v{mean}")
        for e in range(0, n, 2): A(f"v_cvt_pk_bf16_f32 v{reg+e}, v{reg+e}, v{reg+e+1}")
        for e in range(0, n, 2):
            A(f"v_and_b32 v{reg+e+1}, s36, v{reg+e}"); A(f"v_lshlrev_b32 v{reg+e}, 16, v{reg+e}")
        for e in range(n): A(f"v_mul_f32 v{reg+e}, v{reg+e}, v{rden}")
        for e in range(0, n, 2): A(f"v_cvt_pk_bf16_f32 v{reg+e}, v{reg+e}, v{reg+e+1}")
    def lnunpack(reg, n):
        for e in range(0, n, 2):
            A(f"v_and_b32 v{reg+e+1}, s36, v{reg+e}"); A(f"v_lshlrev_b32 v{reg+e}, 16, v{reg+e}")
    A("s_waitcnt vmcnt(32)")
    stamp(1)
    unpack(X, 8, 4)
    lnstats(34, 35)
    unpack(36, 12, 1)
    lnapply(36, 2, 34, 35)
    XP = 36; GA = 40
    def permW(waits):
        spare = 127; names = []
        for c in range(16):
            if waits: A(f"s_waitcnt vmcnt({30 - 2*c})")
            row = []
            for k in range(4):
                r0 = W + 8*c + k; r1 = W + 8*c + 4 + k
                A(f"v_perm_b32 v{spare}, v{r1}, v{r0}, s39")
                A(f"v_perm_b32 v{r1}, v{r1}, v{r0}, s40")
                row.append((spare, r1)); spare = r0
            names.append(row)
        return names
    def gemv(names):
        for c in range(16):
            for k in range(4):
                lo, hi = names[c][k]
                A(f"v_dot2c_f32_bf16_dpp v{GA+2*k}, v{XP}, v{lo} row_newbcast:{c} {DPPF}")
                A(f"v_dot2c_f32_bf16_dpp v{GA+2*k+1}, v{XP}, v{hi} row_newbcast:{c} {DPPF}")
    for e in range(8): A(f"v_mov_b32 v{GA+e}, 0")
    A("v_lshlrev_b32 v13, 5, v3"); A("v_lshl_add_u32 v13, v2, 3, v13")
    A("s_lshl_b32 s6, s3, 9"); A("v_add_u32 v38, s6, v13")
    names = permW(True)
    stamp(2)
    gemv(names)
    rowreduce8(GA)
    A(f"ds_write_b64 v38, v[{GA}:{GA+1}] offset:{LDS_Q}")
    A("s_waitcnt lgkmcnt(0)")
    A("s_barrier")
    stamp(3)
    A("s_mov_b32 s44, s28"); A("s_mov_b32 s45, s29"); A("s_mov_b32 s46, 0x80000"); A("s_mov_b32 s47, 0x20000")
    A("s_lshl_b32 s6, s2, 11"); A("v_lshl_add_u32 v39, v5, 4, s6")
    A("s_lshl_b32 s6, s30, 2"); A("v_mov_b32 v6, s6")
    A("s_cmp_lg_u32 s3, 0"); A("s_cbranch_scc1 L_noclear")
    for e in range(4): A(f"v_mov_b32 v{40+e}, -1")
    A("buffer_store_dwordx4 v[40:43], v39, s[44:47], 0 offen sc1")
    A("buffer_store_dwordx4 v[40:43], v39, s[44:47], 0 offen offset:1024 sc1")
    A("v_mov_b32 v7, 1")
    A("s_waitcnt vmcnt(0)")
    A("s_mov_b64 exec, 1")
    A("global_atomic_add v6, v7, s[26:27]")
    A("s_mov_b64 exec, -1")
    A("L_noclear:")
    A("v_mul_u32_u24 v7, 56, v5")
    A("s_mov_b32 s50, 3584"); A("s_mov_b32 s51, 0x20000")
    P1, P2, P3 = 48, 76, 104
    for (ptr, dst) in ((16, P1 + 14), (18, P2 + 14), (20, P3)):
        A(f"s_mov_b32 s48, s{ptr}"); A(f"s_mov_b32 s49, s{ptr+1}")
        A(f"buffer_load_dwordx4 v[{dst}:{dst+3}], v7, s[48:51], 0 offen")
        A(f"buffer_load_dwordx4 v[{dst+4}:{dst+7}], v7, s[48:51], 0 offen offset:16")
        A(f"buffer_load_dwordx4 v[{dst+8}:{dst+11}], v7, s[48:51], 0 offen offset:32")
        A(f"buffer_load_dwordx2 v[{dst+12}:{dst+13}], v7, s[48:51], 0 offen offset:48")
    A("s_mov_b32 s48, s22"); A("s_mov_b32 s49, s23"); A("s_mov_b32 s50, 2")
    A("v_mov_b32 v7, 0")
    A("buffer_load_ushort v118, v7, s[48:51], 0 offen")
    A("v_and_b32 v7, 3, v3"); A("v_lshl_add_u32 v7, v7, 2, v2")
    A("v_lshl_add_u32 v119, v7, 1, s5")
    A(f"v_lshlrev_b32 v121, 2, v7")
    A("buffer_load_ushort v120, v119, s[8:11], 0 offen")
    lnapply(X, 8, 34, 35); lnunpack(X, 8)
    H = 8
    unpack(H, 14, 2)
    lnapply(H, 4, 34, 35); lnunpack(H, 4)
    lnstats(34, 35)
    lnapply(H, 4, 34, 35); lnunpack(H, 4)
    A("s_waitcnt vmcnt(0)")
    for base in (P1, P2):
        for k in range(14):
            A(f"v_lshlrev_b32 v{base+2*k}, 16, v{base+14+k}"); A(f"v_and_b32 v{base+2*k+1}, s36, v{base+14+k}")
    A("v_lshlrev_b32 v118, 16, v118"); A("v_lshlrev_b32 v120, 16, v120")
    A("s_lshl_b32 s6, s31, 17"); A("s_add_u32 s32, s14, s6"); A("s_addc_u32 s33, s15, 0"); A("s_mov_b32 s34, 0x20000")
    A("s_lshl_b32 s6, s3, 8")
    A("v_lshlrev_b32 v1, 15, v2"); A("v_lshl_add_u32 v1, v3, 4, v1"); A("v_add_u32 v1, s6, v1")
    def woloads():
        for i in range(no):
            if i % 4 == 0 and i: A(f"s_mov_b32 s6, {(i//4)*4096}")
            off = f" offset:{(i%4)*1024}" if i % 4 else ""
            if owin:
                A("s_waitcnt vmcnt(0)"); A(f"s_sleep {owin}")
            A(f"buffer_load_dwordx4 v[{W+4*i}:{W+4*i+3}], v1, s[32:35], {'s6' if i >= 4 else '0'} offen{off} {wflags}")
    if not owin: woloads()
    k1 = -2.0 * 0.7978845608028654 * 1.4426950408889634
    A(f"v_mov_b32 v12, {hex(f2u(k1))}"); A(f"v_mov_b32 v14, {hex(f2u(k1 * 0.044715))}")
    A("s_lshl_b32 s6, s3, 4"); A(f"s_add_u32 s6, s6, {LDS_Y}"); A("v_mov_b32 v7, s6")
    A("s_mov_b32 s7, 0")
    A("L_bloop:")
    A("v_mov_b32 v16, 0")
    def gel(pairs):
        seqs = []
        for n, pidx in enumerate(pairs):
            t = 18 + 6*n; z = t + 2; u = t + 4
            w1 = P1 + 2*pidx; b1 = P2 + 2*pidx; w2 = P3 + pidx
            seqs.append([
                f"v_pk_mul_f32 v[{t}:{t+1}], v[{w1}:{w1+1}], v[{H}:{H+1}] op_sel_hi:[1,0]",
                f"v_cvt_pk_bf16_f32 v{u}, v{t}, v{t+1}",
                f"v_lshlrev_b32 v{t}, 16, v{u}", f"v_and_b32 v{t+1}, s36, v{u}",
                f"v_pk_add_f32 v[{t}:{t+1}], v[{t}:{t+1}], v[{b1}:{b1+1}]",
                f"v_cvt_pk_bf16_f32 v{u}, v{t}, v{t+1}",
                f"v_lshlrev_b32 v{t}, 16, v{u}", f"v_and_b32 v{t+1}, s36, v{u}",
                f"v_pk_mul_f32 v[{z}:{z+1}], v[{t}:{t+1}], v[{t}:{t+1}]",
                f"v_pk_fma_f32 v[{z}:{z+1}], v[{z}:{z+1}], v[14:15], v[12:13] op_sel_hi:[1,0,0]",
                f"v_pk_mul_f32 v[{z}:{z+1}], v[{z}:{z+1}], v[{t}:{t+1}]",
                f"v_exp_f32 v{z}, v{z}", f"v_exp_f32 v{z+1}, v{z+1}",
                f"v_pk_add_f32 v[{z}:{z+1}], v[{z}:{z+1}], 1.0 op_sel_hi:[1,0]",
                f"v_rcp_f32 v{z}, v{z}", f"v_rcp_f32 v{z+1}, v{z+1}",
                f"v_pk_mul_f32 v[{z}:{z+1}], v[{z}:{z+1}], v[{t}:{t+1}]",
                f"v_cvt_pk_bf16_f32 v{u}, v{z}, v{z+1}",
                f"v_dot2c_f32_bf16 v16, v{u}, v{w2}"])
        for k in range(len(seqs[0])):
            for s in seqs: A(s[k])
    for p in range(0, 14, 2): gel((p, p + 1))
    allreduce("v_add_f32", 16, 17)
    rbf(16, 16, "s36"); A("v_add_f32 v16, v16, v118"); rbf(16, 16, "s36")
    A("ds_write_b32 v7, v16")
    A("v_add_u32 v7, 4, v7")
    A(f"v_mov_b32 v{H}, v{H+1}"); A(f"v_mov_b32 v{H+1}, v{H+2}"); A(f"v_mov_b32 v{H+2}, v{H+3}")
    A("s_add_u32 s7, s7, 1"); A(f"s_cmp_lt_u32 s7, {1 if bskip else 4}"); A("s_cbranch_scc1 L_bloop")
    stamp(4)
    if owin: woloads()
    A("s_waitcnt vmcnt(0)")
    names = permW(False)
    for e in range(8): A(f"v_mov_b32 v{GA+e}, 0")
    A("s_lshl_b32 s6, s30, 16"); A("s_lshl_b32 s7, s3, 14"); A("s_add_u32 s6, s6, s7")
    A("s_lshl_b32 s7, s31, 6"); A("s_add_u32 s6, s6, s7")
    A("v_lshrrev_b32 v1, 1, v3"); A("v_lshlrev_b32 v1, 11, v1")
    A("v_and_b32 v4, 1, v3"); A("v_lshl_add_u32 v1, v4, 5, v1"); A("v_lshl_add_u32 v1, v2, 3, v1"); A("v_add_u32 v1, s6, v1")
    A("v_lshlrev_b32 v4, 3, v5")
    A("s_mov_b32 s7, 0")
    A("L_cnt:")
    A("global_load_dword v16, v6, s[26:27] sc1")
    A("s_waitcnt vmcnt(0)")
    A("v_readfirstlane_b32 s6, v16")
    A("s_cmp_ge_u32 s6, 32"); A("s_cbranch_scc1 L_cntok")
    A("s_sleep 8")
    A("s_add_u32 s7, s7, 1"); A("s_cmp_lt_u32 s7, 0x100000"); A("s_cbranch_scc1 L_cnt")
    A("L_cntok:")
    A(f"v_mov_b32 v7, {LDS_ML}")
    A("L_ml:")
    A("s_sleep 4")
    for w in range(4): A(f"ds_read_b96 v[{16+4*w}:{18+4*w}], v7 offset:{16*w}")
    A("s_waitcnt lgkmcnt(0)")
    A("v_min_u32 v32, v18, v22"); A("v_min3_u32 v32, v32, v26, v30")
    A("v_readfirstlane_b32 s6, v32")
    A("s_cmp_lt_u32 s6, 15"); A("s_cbranch_scc1 L_ml")
    for w in range(4): A(f"ds_read_b64 v[{16+4*w}:{17+4*w}], v7 offset:{16*w}")
    A("s_waitcnt lgkmcnt(0)")
    A("v_max_f32 v32, v16, v20"); A("v_max3_f32 v32, v32, v24, v28")
    A(f"s_mov_b32 s6, {hex(f2u(1.4426950408889634))}")
    for w in range(4): A(f"v_sub_f32 v{16+4*w}, v{16+4*w}, v32")
    for w in range(4): A(f"v_mul_f32 v{16+4*w}, s6, v{16+4*w}")
    for w in range(4): A(f"v_exp_f32 v{16+4*w}, v{16+4*w}")
    A("v_mul_f32 v32, v16, v17")
    for w in range(1, 4): A(f"v_fmac_f32 v32, v{16+4*w}, v{17+4*w}")
    A("v_rcp_f32 v32, v32")
    for w in range(4): A(f"v_mul_f32 v{16+4*w}, v{16+4*w}, v32")
    A("s_setprio 3")
    stamp(5)
    A("s_barrier")
    for w in range(4): A(f"ds_read_b64 v[{8+2*w}:{9+2*w}], v4 offset:{LDS_O + 512*w}")
    A(f"ds_read_b32 v121, v121 offset:{LDS_Y}")
    A("s_waitcnt lgkmcnt(4)"); A("v_pk_mul_f32 v[8:9], v[8:9], v[16:17] op_sel_hi:[1,0]")
    A("s_waitcnt lgkmcnt(3)"); A("v_pk_fma_f32 v[8:9], v[10:11], v[20:21], v[8:9] op_sel_hi:[1,0,1]")
    A("s_waitcnt lgkmcnt(2)"); A("v_pk_fma_f32 v[8:9], v[12:13], v[24:25], v[8:9] op_sel_hi:[1,0,1]")
    A("s_waitcnt lgkmcnt(1)"); A("v_pk_fma_f32 v[8:9], v[14:15], v[28:29], v[8:9] op_sel_hi:[1,0,1]")
    A(f"v_cvt_pk_bf16_f32 v{XP}, v8, v9")
    gemv(names)
    rowreduce8(GA)
    A(f"v_min_u32 v{GA}, -2, v{GA}"); A(f"v_min_u32 v{GA+1}, -2, v{GA+1}")
    A(f"buffer_store_dwordx2 v[{GA}:{GA+1}], v1, s[44:47], 0 offen sc1")
    stamp(6)
    A("s_cmp_lg_u32 s3, 0"); A("s_cbranch_scc1 L_end")
    A("s_mov_b32 s48, s24"); A("s_mov_b32 s49, s25"); A("s_mov_b32 s50, 8192")
    A("s_mov_b32 s7, 0")
    A("L_poll:")
    A("buffer_load_dwordx4 v[8:11], v39, s[44:47], 0 offen sc1")
    A("buffer_load_dwordx4 v[12:15], v39, s[44:47], 0 offen offset:1024 sc1")
    A("s_waitcnt vmcnt(0)")
    A("v_max3_u32 v16, v8, v9, v10"); A("v_max3_u32 v17, v11, v12, v13"); A("v_max3_u32 v16, v16, v14, v15"); A("v_max_u32 v16, v16, v17")
    A("v_cmp_eq_u32 vcc, -1, v16")
    A("s_cbranch_vccz L_got")
    A("s_add_u32 s7, s7, 1"); A("s_cmp_lt_u32 s7, 0x100000"); A("s_cbranch_scc1 L_poll")
    A("L_got:")
    stamp(7)
    for e in range(4): A(f"v_add_f32 v{8+e}, v{8+e}, v{12+e}")
    for e in range(4): A(f"v_add_f32_dpp v{8+e}, v{8+e}, v{8+e} row_ror:4 {DPPF}")
    for e in range(4): A(f"v_add_f32_dpp v{8+e}, v{8+e}, v{8+e} row_ror:8 {DPPF}")
    A("v_permlane32_swap_b32 v8, v10"); A("v_permlane32_swap_b32 v9, v11")
    A("v_add_f32 v8, v8, v10"); A("v_add_f32 v9, v9, v11")
    A("v_permlane16_swap_b32 v8, v9"); A("v_add_f32 v8, v8, v9")
    rbf(8, 8, "s36"); A("v_add_f32 v8, v8, v120"); rbf(8, 8, "s36"); A("s_waitcnt lgkmcnt(0)"); A("v_add_f32 v8, v8, v121")
    A("v_cvt_pk_bf16_f32 v8, v8, v8")
    A("s_mov_b32 exec_lo, 0x000f000f"); A("s_mov_b32 exec_hi, 0x000f000f")
    A("buffer_store_short v8, v119, s[48:51], 0 offen")
    if fixdur:
        A(f"s_add_u32 s58, s58, {fixdur*100}")
        A("L_fix:"); A("s_memrealtime s[56:57]"); A("s_waitcnt lgkmcnt(0)"); A("s_sub_u32 s56, s56, s58"); A("s_cmp_lt_i32 s56, 0"); A("s_cbranch_scc1 L_fix")
    if stamps:
        A("s_waitcnt vmcnt(0)")
        stamp(8)
        dump_stamps(1)
    A("L_end:")
    A("s_endpgm")
    A.fix()
    pr = A.check_edges()
    assert not pr, pr
    head = HEADER + "; @launch grid=(256,1,1) block=(512,1,1) lds=8192\n" + \
        '.amdgcn_target "amdgcn-amd-amdhsa--gfx950"\n.text\n' + f".globl {NAME}_kernel\n.p2align 8\n.type {NAME}_kernel,@function\n"
    tail = f""".section .rodata,"a"
.p2align 6
.amdhsa_kernel {NAME}_kernel
  .amdhsa_next_free_vgpr 256
  .amdhsa_next_free_sgpr 80
  .amdhsa_accum_offset 256
  .amdhsa_group_segment_fixed_size 0
  .amdhsa_kernarg_size 104
  .amdhsa_user_sgpr_count 2
  .amdhsa_user_sgpr_kernarg_segment_ptr 1
  .amdhsa_system_sgpr_workgroup_id_x 1
.end_amdhsa_kernel
"""
    return head + A.text() + tail

if __name__ == "__main__":
    import json
    kw = json.loads(sys.argv[2]) if len(sys.argv) > 2 else {}
    open(sys.argv[1], "w").write(gen(**kw))
```
